```python
import torch

def _softmax(x, axis=-1):
    return torch.softmax(x, dim=axis)
def _gelu(x):
    return torch.nn.functional.gelu(x, approximate="tanh")
def _silu(x):
    return torch.nn.functional.silu(x)
def _sigmoid(x):
    return torch.sigmoid(x)
def _layernorm(x, axis=-1, eps=1e-5):
    m = x.mean(dim=axis, keepdim=True)
    v = x.var(dim=axis, keepdim=True, unbiased=False)
    return (x - m) / torch.sqrt(v + eps)
def _scatter_add(tgt, idx, src, axis=0):
    return tgt.clone().index_add_(axis, idx, src)
def _segment_sum(src, seg, n):
    out = torch.zeros((n,) + src.shape[1:], dtype=src.dtype)
    return out.index_add_(0, seg, src)
def _pad(x, pw):
    flat = tuple(v for pair in reversed(pw) for v in pair)
    return torch.nn.functional.pad(x, flat)

kernel_name = 'standalone__ragged_sequences_packed_sequences__ragged'

def setup_inputs():

    _w = (lambda a: (lambda t: t.to(torch.bfloat16) if t.is_floating_point() else t)(torch.as_tensor(a)))
    cu = torch.tensor([0, 369, 582, 865, 1200], dtype=torch.int64)
    T = int(cu[-1])
    H, D = 16, 128
    lens = torch.diff(cu)
    seg_ids = torch.repeat_interleave(torch.arange(len(lens), dtype=torch.int64), lens)
    return {
        "q": _w((lambda *s: torch.randn(*s, dtype=torch.bfloat16) * 0.8)(T, H, D)),
        "k": _w((lambda *s: torch.randn(*s, dtype=torch.bfloat16) * 0.8)(T, H, D)),
        "v": _w((lambda *s: torch.randn(*s, dtype=torch.bfloat16) * 0.05)(T, H, D)),
        "seg_ids": _w(seg_ids),
    }

def reference(q, k, v, seg_ids):
    T, H, D = q.shape
    scale = D ** -0.5
    same_seq = seg_ids[:, None] == seg_ids[None, :]
    logits = torch.einsum("qhd,khd->hqk", q, k) * scale
    bias = (1.0 - (lambda x, dt: x.to(dt))(same_seq, q.dtype)) * (-1e9)
    p = _softmax(logits + bias[None, :, :], axis=-1)
    return torch.einsum("hqk,khd->qhd", p, v)
```

```python
KN='standalone__ragged_sequences_packed_sequences__ragged_kernel'
def header(grid,block,lds):
    return f"""; @launch grid=({grid},1,1) block=({block},1,1) lds={lds}
.amdgcn_target "amdgcn-amd-amdhsa--gfx950"
.text
.globl {KN}
.p2align 8
.type {KN},@function
{KN}:
"""
def footer(vgpr=256,sgpr=102,accum=256):
    return f"""
.section .rodata,"a"
.p2align 6
.amdhsa_kernel {KN}
  .amdhsa_next_free_vgpr {vgpr}
  .amdhsa_next_free_sgpr {sgpr}
  .amdhsa_accum_offset {accum}
  .amdhsa_group_segment_fixed_size 0
  .amdhsa_kernarg_size 56
  .amdhsa_user_sgpr_count 2
  .amdhsa_user_sgpr_kernarg_segment_ptr 1
  .amdhsa_system_sgpr_workgroup_id_x 1
.end_amdhsa_kernel
"""
def stamp(i,real=False):
    return f"    s_mem{'real' if real else ''}time s[{60+2*i}:{61+2*i}]\n"
def stamp_flush(n,waves_per_wg,wsreg,wavereg,vt=250):
    s=stamp(n-1,True)
    s+="    s_waitcnt lgkmcnt(0)\n"
    s+=f"    s_mul_i32 s58, s2, {waves_per_wg}\n    s_add_u32 s58, s58, s{wavereg}\n    s_mul_i32 s58, s58, {n*8}\n"
    s+=f"    s_mov_b64 exec, 1\n    v_mov_b32 v{vt}, s58\n"
    for i in range(n):
        s+=f"    v_mov_b32 v{vt+2}, s{60+2*i}\n    v_mov_b32 v{vt+3}, s{61+2*i}\n"
        s+=f"    global_store_dwordx2 v{vt}, v[{vt+2}:{vt+3}], s[{wsreg}:{wsreg+1}] offset:{i*8}\n    s_nop 1\n"
    return s

def dbg_flush(n, reg, slots, vt=230):
    s=stamp(n-1,True)
    s+="    s_waitcnt lgkmcnt(0)\n    s_mov_b64 exec, 1\n"
    s+=f"    v_mov_b32 v{vt}, 0\n"
    def amax(src, slot, neg):
        t=f"    v_mov_b32 v{vt+2}, {src}\n"
        if neg: t+=f"    v_not_b32 v{vt+2}, v{vt+2}\n"
        t+=f"    global_atomic_umax v{vt}, v{vt+2}, s[{reg}:{reg+1}] offset:{slot*4}\n    s_nop 1\n"
        return t
    s+=amax("s60",0,True)+amax("s60",1,False)+amax(f"s{60+2*(n-1)}",2,False)+amax(f"s{60+2*(n-1)}",3,True)
    for i,slot,neg in slots:
        s+=f"    s_sub_u32 s58, s{60+2*i}, s62\n"+amax("s58",slot,neg)
    return s
```

```python
import sys, math, struct
from common import KN, stamp, stamp_flush, dbg_flush

opt = dict(D=3, rot=0, stamps=0, lsum='mfma', prio=1, headmap=0, pf=0, out='attn.s')
for a in sys.argv[1:]:
    k, v = a.split('=')
    opt[k] = v if k in ('lsum', 'out') else int(v)

CU = [0, 369, 582, 865, 1200]
SLOT = 17024
KP, VP = 1040, 1088
VOFF = 8320
LDS = 163840
LAREA = 161280
DUMMY = (4095 << 20) | 0x30000
C_EXP = math.log2(math.e) / math.sqrt(128.0)
def f32(x): return struct.unpack('<I', struct.pack('<f', x))[0]

def wg_list():
    w = []
    for i in range(6): w.append(dict(seg=0, q0=64*i, nqb=2, typ='S', j=i, nj=6))
    for i in range(2): w.append(dict(seg=1, q0=128*i, nqb=4-i, typ='N', j=i, nj=2))
    for i in range(3): w.append(dict(seg=2, q0=96*i, nqb=3, typ='N', j=i, nj=3))
    for i in range(4): w.append(dict(seg=3, q0=64*i, nqb=2, typ='S', j=i, nj=5))
    w.append(dict(seg=3, q0=256, nqb=3, typ='N', j=4, nj=5))
    return w

def rotl(l, k):
    if not l: return l
    k %= len(l)
    return l[k:] + l[:k]

def records():
    recs = []
    for w in wg_list():
        s0 = CU[w['seg']]; L = CU[w['seg']+1] - s0; nt = (L + 31)//32; tail = nt - 1
        nv = L - 32*tail
        nq = min(32*w['nqb'], L - w['q0'])
        r = opt['rot']
        if w['typ'] == 'S':
            nx = 6
            X = rotl(list(range(nx)), r*w['j'])
            Y = [tail] + rotl(list(range(nx, tail)), r*w['j'])
            sx = [(i % 4)*SLOT for i in range(len(X))]
            sy = [(4 + i % 4)*SLOT for i in range(len(Y))]
            qb = 8*SLOT
        else:
            X = [tail] + rotl(list(range(tail)), r*w['j']*(tail//w['nj']))
            Y = []
            ns = 7 if w['nqb'] == 4 else 8
            sx = [(i % ns)*SLOT for i in range(len(X))]
            sy = []
            qb = ns*SLOT
        G = len(X)
        ld = [s0*4096, (L-1)*4096+256, (s0+w['q0'])*4096, (nq-1)*4096+256, w['nqb'], qb, G, 0]
        for i in range(12):
            ld.append((X[i] << 20 | sx[i]) if i < len(X) else DUMMY)
            ld.append((Y[i] << 20 | sy[i]) if i < len(Y) else DUMMY)
        recs.append(ld)
        for c in range(4):
            if w['typ'] == 'S':
                b = c & 1; h = c >> 1
                T, S = (X, sx) if h == 0 else (Y, sy)
                mode = 1 + h
                xw = (4*h + b)*SLOT
                xr = (4*(1-h) + b)*SLOT
                lw = LAREA + c*256; lr = LAREA + (c ^ 2)*256
                busy = {sx[-1], sy[-1]}
            else:
                b = c; T, S = X, sx; mode = 0
                xw = xr = c*SLOT; lw = lr = LAREA
                busy = {sx[-1]}
                if b >= w['nqb']: T = []
            free = [k*SLOT for k in range(7) if k*SLOT not in busy]
            rows = min(32, L - w['q0'] - 32*b) if T else 1
            j = [(s0 + w['q0'] + 32*b)*4096, (rows-1)*4096+256, qb + b*8320, len(T),
                 nv if (T and T[0] == tail) else 32, mode, xw, xr,
                 G - len(T), s0*4096, (L-1)*4096+256, L, free[c] + VOFF, lw, lr, 0]
            sl = list(S[:len(T)]) if T else []
            sl += [0]*(16 - len(sl))
            recs.append(j + sl)
    return recs

vKL, vVL, vK, vV, vX16, vTW, vTR, vST = 1, 2, 3, 4, 5, 6, 10, 11
vL, vA, vP, vT = 12, 16, 20, 28
vS = [32, 48]
vO, vQ, vKF, vVF = 64, 128, 160, 192
sC, sEND, sSA, sSB = 60, 61, 62, 63
if opt['stamps']:
    sC, sEND, sSA, sSB = 96, 97, 98, 99
def r(a, n): return f"v[{a}:{a+n-1}]"
NST = 10
def st(i, real=False): return stamp(i, real) if opt['stamps'] else ""

o = []
A = o.append
A(f"; @launch grid=(256,1,1) block=(512,1,1) lds={LDS}")
A('.amdgcn_target "amdgcn-amd-amdhsa--gfx950"')
A(f".text\n.globl {KN}\n.p2align 8\n.type {KN},@function\n{KN}:")
A(st(0, True) + st(1))
A("""    s_cmp_ge_u32 s2, 256
    s_cbranch_scc1 L_end
    s_load_dwordx4 s[4:7], s[0:1], 0
    s_load_dwordx2 s[8:9], s[0:1], 16
    s_load_dwordx2 s[10:11], s[0:1], 32
    v_lshrrev_b32 v1, 6, v0
    s_getpc_b64 s[12:13]
L_pc:
    v_readfirstlane_b32 s14, v1
    s_bfe_u32 s3, s2, 0x40003
    s_mul_i32 s3, s3, 5
    v_and_b32 v0, 63, v0
    s_sub_u32 s15, s14, 3
    s_max_i32 s15, s15, 0
    s_add_u32 s3, s3, s15
    s_lshl_b32 s3, s3, 7
    s_add_u32 s3, s3, L_table-L_pc
    s_add_u32 s12, s12, s3
    s_addc_u32 s13, s13, 0
    s_load_dwordx16 s[16:31], s[12:13], 0
    s_load_dwordx16 s[32:47], s[12:13], 64""")
if opt['stamps']:
    A(f"    s_load_dwordx2 s[94:95], s[0:1], {40 if opt['stamps'] == 2 else 48}")
if opt['headmap'] == 0:
    A("""    s_and_b32 s15, s2, 7
    s_lshl_b32 s15, s15, 9
    s_lshr_b32 s3, s2, 7
    s_lshl_b32 s3, s3, 8
    s_add_u32 s15, s15, s3""")
else:
    A("""    s_and_b32 s15, s2, 7
    s_lshl_b32 s15, s15, 8
    s_lshr_b32 s3, s2, 7
    s_lshl_b32 s3, s3, 11
    s_add_u32 s15, s15, s3""")
A("""    s_mov_b32 s51, 0x20000
    s_mov_b32 s55, 0x20000
    s_mov_b32 s59, 0x20000
    s_cmp_ge_u32 s14, 4
    s_cbranch_scc1 L_compute""")
D = opt['D']
A(f"""    v_lshrrev_b32 v1, 4, v0
    v_and_b32 v2, 15, v0
    v_lshlrev_b32 v3, 14, v1
    v_lshl_add_u32 v3, v2, 4, v3
    s_lshl_b32 s3, s14, 12
    v_add_u32 v3, s3, v3
    v_and_b32 v1, 32, v0
    v_lshlrev_b32 v1, 2, v1
    v_xor_b32 v1, v1, v3
    v_add_u32 v2, 0x10000, v1
    v_add_u32 v4, 0x10000, v3
    s_mul_i32 s80, s14, {KP}
    s_mul_i32 s81, s14, {VP}
    s_add_u32 s81, s81, {VOFF}
    s_waitcnt lgkmcnt(0)""")
A(st(2))
A(f"""    s_add_u32 s18, s18, s15
    s_add_u32 s48, s4, s18
    s_addc_u32 s49, s5, 0
    s_mov_b32 s50, s19
    s_add_u32 s16, s16, s15
    s_add_u32 s52, s6, s16
    s_addc_u32 s53, s7, 0
    s_mov_b32 s54, s17
    s_add_u32 m0, s21, s80
    s_mov_b32 s82, 0
L_ldq:
    buffer_load_dwordx4 v1, s[48:51], s82 offen lds
    s_add_u32 m0, m0, {4*KP}
    s_sub_u32 s20, s20, 1
    buffer_load_dwordx4 v2, s[48:51], s82 offen lds
    s_add_u32 m0, m0, {4*KP}
    s_add_u32 s82, s82, 0x20000
    s_cmp_lg_u32 s20, 0
    s_cbranch_scc1 L_ldq
    s_add_u32 s56, s8, s16
    s_addc_u32 s57, s9, 0
    s_mov_b32 s58, s17
    s_mov_b32 s83, 0
    s_branch L_ldk
L_ldloop:
    s_cmp_lt_u32 s83, {D}
    s_cbranch_scc1 L_ldv
    s_waitcnt vmcnt({8*(D-1)})
    s_barrier
    s_cmp_gt_u32 s83, s22
    s_cbranch_scc1 L_ldtail
L_ldv:
    s_add_u32 m0, s84, s81
    s_nop 0
    buffer_load_dwordx4 v3, s[56:59], s85 offen lds
    s_add_u32 m0, m0, {4*VP}
    s_nop 0
    buffer_load_dwordx4 v4, s[56:59], s85 offen lds
    s_add_u32 m0, s86, s81
    s_nop 0
    buffer_load_dwordx4 v3, s[56:59], s87 offen lds
    s_add_u32 m0, m0, {4*VP}
    s_nop 0
    buffer_load_dwordx4 v4, s[56:59], s87 offen lds
L_ldk:
    s_lshl_b32 m0, s83, 1
    s_add_u32 s83, s83, 1
    s_movrels_b64 s[88:89], s[24:25]
    s_and_b32 s84, s88, 0xfffff
    s_add_u32 m0, s84, s80
    s_lshr_b32 s85, s88, 20
    s_lshl_b32 s85, s85, 17
    buffer_load_dwordx4 v1, s[52:55], s85 offen lds
    s_add_u32 m0, m0, {4*KP}
    s_and_b32 s86, s89, 0xfffff
    buffer_load_dwordx4 v2, s[52:55], s85 offen lds
    s_add_u32 m0, s86, s80
    s_lshr_b32 s87, s89, 20
    s_lshl_b32 s87, s87, 17
    buffer_load_dwordx4 v1, s[52:55], s87 offen lds
    s_add_u32 m0, m0, {4*KP}
    s_nop 0
    buffer_load_dwordx4 v2, s[52:55], s87 offen lds
    s_branch L_ldloop
L_ldtail:""")
A(st(3))
for k in range(D-2, -1, -1):
    A(f"    s_waitcnt vmcnt({8*k})\n    s_barrier")
if opt['stamps']:
    for i in range(4, NST-1): A(st(i))
    A(stamp_flush(NST, 8, 94, 14, vt=230) if opt['stamps'] == 1 else dbg_flush(NST, 94, [(2, 11, 0), (3, 12, 0)]))
A("L_end:\n    s_endpgm")

A("L_compute:")
if opt['prio']: A(f"    s_setprio {opt['prio']}")
A(f"""    v_and_b32 v28, 3, v0
    v_mul_u32_u24 v{vKL}, {KP}, v28
    v_bfe_u32 v28, v0, 4, 1
    v_mul_u32_u24 v29, {4*KP}, v28
    v_add_u32 v{vKL}, v{vKL}, v29
    v_bfe_u32 v29, v0, 2, 2
    v_lshl_add_u32 v{vKL}, v29, 8, v{vKL}
    v_mul_u32_u24 v{vVL}, {VP}, v29
    v_lshl_add_u32 v{vVL}, v28, 4, v{vVL}
    v_lshrrev_b32 v30, 5, v0
    v_lshl_add_u32 v{vVL}, v30, 8, v{vVL}
    v_bfe_u32 v31, v0, 3, 1
    v_xor_b32 v31, v31, v30
    v_lshl_add_u32 v{vKL}, v31, 7, v{vKL}
    v_and_b32 v31, 1, v0
    v_lshl_add_u32 v{vVL}, v31, 5, v{vVL}
    v_bfe_u32 v31, v0, 1, 1
    v_lshl_add_u32 v{vVL}, v31, 3, v{vVL}
    v_and_b32 v29, 1, v29
    v_cmp_eq_u32 vcc, v28, v29
    v_mov_b32 v29, 0x3f803f80
    v_lshlrev_b32 v{vX16}, 4, v0
    v_cndmask_b32 v{vA}, 0, v29, vcc
    v_cndmask_b32 v{vA+1}, 0, v29, vcc
    v_cndmask_b32 v{vA+2}, 0, v29, vcc
    v_cndmask_b32 v{vA+3}, 0, v29, vcc
    v_and_b32 v28, 7, v0
    v_lshlrev_b32 v29, 1, v30
    v_xor_b32 v29, v29, v28
    v_and_b32 v31, 31, v0
    v_lshlrev_b32 v31, 7, v31
    v_lshl_add_u32 v{vTW}, v29, 4, v31
    v_lshrrev_b32 v29, 3, v0
    v_xor_b32 v31, v29, v28
    v_lshlrev_b32 v31, 4, v31
    v_lshl_add_u32 v{vTR}, v29, 7, v31
    v_lshlrev_b32 v31, 4, v28
    v_lshl_add_u32 v{vST}, v29, 12, v31
    v_lshlrev_b32 v30, 2, v30
    s_mov_b32 s{sC}, {hex(f32(C_EXP))}""")
for i in range(64): A(f"    v_mov_b32 v{vO+i}, 0")
for i in range(4): A(f"    v_mov_b32 v{vL+i}, 0")
A("    v_mov_b32 v31, 0xff800000\n    s_waitcnt lgkmcnt(0)")
A(st(2))
A(f"""    s_cmp_eq_u32 s19, 0
    s_cbranch_scc1 L_end
    v_sub_u32 v29, s20, v30""")
def cimask(dst, vrem, vinf):
    s = ""
    for i in range(16):
        s += f"    v_cmp_ge_i32 vcc, {(i & 3) + 8*(i >> 2)}, v{vrem}\n    s_nop 1\n    v_cndmask_b32 v{dst+i}, 0, v{vinf}, vcc\n"
    return s
A(cimask(vS[1], 29, 31))
A(f"""    v_add_u32 v28, s18, v{vKL}
    v_add_u32 v{vK}, s32, v{vKL}
    v_add_u32 v{vV}, s32, v{vVL}
    v_add_u32 v{vTW}, s23, v{vTW}
    v_add_u32 v{vTR}, s23, v{vTR}
    v_xor_b32 v{vTW+1}, 16, v{vTW}
    v_xor_b32 v{vTW+2}, 64, v{vTW}
    v_xor_b32 v{vTW+3}, 0x50, v{vTW}
    s_add_u32 s16, s16, s15
    s_add_u32 s48, s10, s16
    s_addc_u32 s49, s11, 0
    s_mov_b32 s50, s17
    s_add_u32 s{sEND}, s19, 2
    s_mov_b32 s{sSB}, s33
    s_mov_b32 m0, 2
    s_barrier""")
A(st(3))
def kread(j): return f"ds_read_b128 {r(vKF+4*j,4)}, v{vK} offset:{16*j}"
def vread(a, b, s): return f"ds_read_b64_tr_b16 {r(vVF+16*a+4*b+2*s,2)}, v{vV} offset:{VOFF + a*4*VP + s*512 + b*64}"
def qk(j, dst, c=None):
    c = c if c is not None else ('0' if j == 0 else r(dst, 16))
    return f"v_mfma_f32_32x32x16_bf16 {r(dst,16)}, {r(vKF+4*j,4)}, {r(vQ+4*j,4)}, {c}"
def pv(a, b): return f"v_mfma_f32_32x32x16_bf16 {r(vO+16*b,16)}, {r(vVF+16*a+4*b,4)}, {r(vP+4*a,4)}, {r(vO+16*b,16)}"
def lm(a): return f"v_mfma_f32_16x16x32_bf16 {r(vL,4)}, {r(vA,4)}, {r(vP+4*a,4)}, {r(vL,4)}"
for j in range(8):
    A(f"    ds_read_b128 {r(vQ+4*j,4)}, v28 offset:{16*j}\n    {kread(j)}")
for j in range(8):
    if j < 7: A(f"    s_waitcnt lgkmcnt({14-2*j})")
    else: A("    s_waitcnt lgkmcnt(0)")
    A("    " + qk(j, vS[0], r(vS[1], 16) if j == 0 else None))
A(f"    v_add_u32 v{vK}, s33, v{vKL}\n    s_barrier")
A(st(4))
for j in range(8): A("    " + kread(j))
for b in range(4):
    for s in range(2): A("    " + vread(0, b, s))
A("    s_nop 1")

def body(cur, nxt, sK, sV, last_branch):
    S = vS[cur]
    M = lambda e: f"v_mul_f32 v{S+e}, s{sC}, v{S+e}"
    X = lambda e: f"v_exp_f32 v{S+e}, v{S+e}"
    Cv = lambda p: f"v_cvt_pk_bf16_f32 v{vP+p}, v{S+2*p}, v{S+2*p+1}"
    R1 = [vread(1, b, s) for b in range(4) for s in range(2)]
    R0 = [vread(0, b, s) for b in range(4) for s in range(2)]
    Kr = [kread(j) for j in range(8)]
    N = vS[nxt]
    seq = []
    seq += ["s_waitcnt lgkmcnt(12)", qk(0, N), M(0), M(1), X(0), M(2), X(1)]
    seq += [qk(1, N), M(3), X(2), R1[0], R1[1], Cv(0)]
    seq += [qk(2, N), M(4), X(3), M(5), X(4)]
    seq += [qk(3, N), M(6), X(5), Cv(1), "s_waitcnt lgkmcnt(10)"]
    seq += [qk(4, N), R1[2], R1[3], M(7), X(6), Cv(2)]
    seq += [qk(5, N), M(8), X(7), R1[4], R1[5]]
    seq += [qk(6, N), M(9), X(8), Cv(3), R1[6], R1[7]]
    seq += [qk(7, N), M(10), X(9), M(11), X(10), "s_waitcnt lgkmcnt(8)"]
    seq += [pv(0, 0), M(12), X(11), M(13), X(12)]
    seq += [pv(0, 1), M(14), X(13), M(15), X(14)]
    seq += [pv(0, 2), Cv(4), X(15), Cv(5), Cv(6), f"s_movrels_b32 s{sK}, s32"]
    seq += [pv(0, 3), Cv(7), "s_waitcnt lgkmcnt(0)", "s_barrier", f"v_add_u32 v{vK}, s{sK}, v{vKL}", f"v_add_u32 v{vV}, s{sV}, v{vVL}"]
    seq += [lm(0), Kr[0], Kr[1]]
    seq += [pv(1, 0), Kr[2], Kr[3], Kr[4], Kr[5], "s_add_u32 m0, m0, 1"]
    seq += [pv(1, 1), Kr[6], Kr[7], R0[0], R0[1], f"s_cmp_lt_u32 m0, s{sEND}"]
    seq += [pv(1, 2), R0[2], R0[3], R0[4], R0[5]]
    seq += [pv(1, 3), R0[6], R0[7]]
    seq += [lm(1), last_branch]
    return "\n".join("    " + x for x in seq)
A("L_loop:")
A(body(0, 1, sSA, sSB, "s_cbranch_scc0 L_done"))
A(body(1, 0, sSB, sSA, "s_cbranch_scc1 L_loop"))
A("L_done:")
A(st(5))

def W(h):
    src = vO + 32*(1-h)
    s = f"    v_add_u32 v28, s22, v{vX16}\n    v_lshrrev_b32 v30, 2, v{vX16}\n    v_add_u32 v29, s23, v{vX16}\n    v_add_u32 v31, s30, v30\n    v_add_u32 v30, s29, v30\n"
    s += "    s_nop 7\n" if h == 0 else "    s_nop 3\n"
    for k in range(8):
        s += f"    ds_write_b128 v28, {r(src+4*k,4)} offset:{1024*k}\n"
    s += f"    ds_write_b32 v30, v{vL}\n    s_waitcnt lgkmcnt(0)\n"
    s += f"L_pb{h}:\n    s_barrier\n    s_sub_u32 s24, s24, 1\n    s_cbranch_scc0 L_pb{h}\n"
    s += f"    ds_read_b32 v31, v31\n"
    for k in range(8):
        s += f"    ds_read_b128 {r(vKF+4*k,4)}, v29 offset:{1024*k}\n"
    dst = vO + 32*h
    s += f"    s_waitcnt lgkmcnt(8)\n    v_add_f32 v{vL}, v{vL}, v31\n"
    for k in range(8):
        s += f"    s_waitcnt lgkmcnt({7-k})\n"
        for u in range(2):
            s += f"    v_pk_add_f32 {r(dst+4*k+2*u,2)}, {r(dst+4*k+2*u,2)}, {r(vKF+4*k+2*u,2)}\n"
    return s
def CHK():
    return f"""    v_cmp_lt_f32 vcc, {hex(f32(2.0**-30))}, v{vL}
    v_cmp_gt_f32 s[82:83], v{vA+2}, v{vL}
    s_and_b64 vcc, vcc, s[82:83]
    s_cmp_eq_u64 vcc, -1
    s_cbranch_scc0 L_fallback
"""
def F(h):
    src = vO + 32*h
    s = f"    v_rcp_f32 v28, v{vL}\n    s_nop 0\n"
    for q in range(4):
        for k in range(4*q, 4*q+4):
            s += f"    v_pk_mul_f32 {r(src+2*k,2)}, {r(src+2*k,2)}, v[28:29] op_sel_hi:[1,0]\n"
        for k in range(4*q, 4*q+4):
            s += f"    v_cvt_pk_bf16_f32 v{vVF+k}, v{src+2*k}, v{src+2*k+1}\n"
        tw = vTW + (q >> 1)*2 + (q & 1)
        s += f"    ds_write_b128 v{tw}, {r(vVF+4*q,4)} offset:{4096*h}\n"
    s += "    s_waitcnt lgkmcnt(0)\n"
    dst = vKF + 16*h
    for i in range(4):
        s += f"    ds_read_b128 {r(dst+4*i,4)}, v{vTR} offset:{4096*h + 1024*i}\n"
    for i in range(4):
        s += f"    s_waitcnt lgkmcnt({3-i})\n    buffer_store_dwordx4 {r(dst+4*i,4)}, v{vST}, s[48:51], s{84+i} offen offset:{128*h}\n"
    return s
A(f"""    s_mov_b32 s84, 0
    s_mov_b32 s85, 0x8000
    s_mov_b32 s86, 0x10000
    s_mov_b32 s87, 0x18000
    s_cmp_eq_u32 s21, 2
    s_cbranch_scc1 L_h1
    s_cmp_eq_u32 s21, 0
    s_cbranch_scc1 L_chk0n""")
A(W(0))
A("    s_branch L_chk0\nL_chk0n:\n    s_nop 7\n    s_waitcnt lgkmcnt(0)\nL_chk0:")
A(f"    v_mov_b32 v{vA+2}, {hex(f32(2.0**30))}")
A(st(6))
A(CHK())
A("L_f0:")
A(F(0))
A("    s_cmp_eq_u32 s21, 0\n    s_cbranch_scc1 L_f1\n    s_branch L_fin")
A("L_h1:")
A(W(1))
A(f"    v_mov_b32 v{vA+2}, {hex(f32(2.0**30))}")
A(st(6))
A(CHK())
A("L_f1:")
A(F(1))
A("L_fin:")
if opt['stamps']:
    A(st(7) + "    s_waitcnt vmcnt(0)\n" + st(8))
    A(stamp_flush(NST, 8, 94, 14, vt=230) if opt['stamps'] == 1 else dbg_flush(NST, 94, [(i, i+2, 0) for i in range(2, 9)] + [(2, 13, 1), (3, 14, 1), (8, 15, 1)]))
A("    s_endpgm")

A(f"""L_fallback:
    s_add_u32 s25, s25, s15
    s_add_u32 s52, s6, s25
    s_addc_u32 s53, s7, 0
    s_mov_b32 s54, s26
    s_add_u32 s56, s8, s25
    s_addc_u32 s57, s9, 0
    s_mov_b32 s58, s26
    v_mov_b32 v{vA+2}, v{vA}
    v_and_b32 v28, 31, v0
    v_lshlrev_b32 v28, 12, v28
    v_lshrrev_b32 v30, 5, v0
    v_lshl_add_u32 v224, v30, 7, v28
    v_lshlrev_b32 v30, 2, v30
    v_lshrrev_b32 v28, 4, v0
    v_lshlrev_b32 v28, 14, v28
    v_and_b32 v29, 15, v0
    v_lshl_add_u32 v225, v29, 4, v28
    v_mov_b32 v31, 0xff800000
    v_mov_b32 v226, 0xff800000
    s_sub_u32 s88, s28, {VOFF}
    v_add_u32 v{vV}, s88, v{vVL}
    s_mov_b32 s90, 0
L_fb_pass:
    s_mov_b32 s88, 0
    s_mov_b32 s89, s27
L_fb_tile:""")
for j in range(8): A(f"    buffer_load_dwordx4 {r(vKF+4*j,4)}, v224, s[52:55], s88 offen offset:{16*j}")
A(f"    v_sub_u32 v29, s89, v30")
A(cimask(vS[1], 29, 31))
A("    s_waitcnt vmcnt(0)")
for j in range(8): A("    " + qk(j, vS[0], r(vS[1], 16) if j == 0 else None))
A("    s_cmp_eq_u32 s90, 0\n    s_cbranch_scc0 L_fb_p2\n    s_nop 15")
for i in range(16): A(f"    v_max_f32 v226, v226, v{vS[0]+i}")
A("    s_branch L_fb_next\nL_fb_p2:")
for p in range(8):
    A(f"    s_add_u32 m0, s28, {p*VP}\n    s_add_u32 s91, s88, {((p & 3) + 16*(p >> 2))*4096}\n    buffer_load_dwordx4 v225, s[56:59], s91 offen lds")
A("    s_nop 7")
for e in range(16): A(f"    v_fma_f32 v{vS[0]+e}, v{vS[0]+e}, s{sC}, -v226")
for e in range(16): A(f"    v_exp_f32 v{vS[0]+e}, v{vS[0]+e}")
A("    s_nop 0")
for p in range(8): A(f"    v_cvt_pk_bf16_f32 v{vP+p}, v{vS[0]+2*p}, v{vS[0]+2*p+1}")
A("    s_waitcnt vmcnt(0)")
for a in range(2):
    for b in range(4):
        for s in range(2): A("    " + vread(a, b, s))
A("    s_waitcnt lgkmcnt(0)")
for a in range(2):
    for b in range(4): A("    " + pv(a, b))
    A("    " + lm(a))
A(f"""L_fb_next:
    s_add_u32 s88, s88, 0x20000
    s_sub_u32 s89, s89, 32
    s_cmp_gt_i32 s89, 0
    s_cbranch_scc1 L_fb_tile
    s_cmp_eq_u32 s90, 0
    s_cbranch_scc0 L_fb_out
    s_mov_b32 s90, 1
    v_mov_b32 v227, v226
    s_nop 1
    v_permlane32_swap_b32 v227, v226
    v_max_f32 v226, v226, v227
    v_mul_f32 v226, s{sC}, v226""")
for i in range(64): A(f"    v_mov_b32 v{vO+i}, 0")
for i in range(4): A(f"    v_mov_b32 v{vL+i}, 0")
A("""    s_branch L_fb_pass
L_fb_out:
    s_nop 15
    s_cmp_eq_u32 s21, 2
    s_cbranch_scc1 L_f1
    s_branch L_f0""")
A(".p2align 7\nL_table:")
for rec in records():
    A("    .long " + ", ".join(hex(x) for x in rec))
A(f""".section .rodata,"a"
.p2align 6
.amdhsa_kernel {KN}
  .amdhsa_next_free_vgpr 256
  .amdhsa_next_free_sgpr 102
  .amdhsa_accum_offset 256
  .amdhsa_group_segment_fixed_size 0
  .amdhsa_kernarg_size 56
  .amdhsa_user_sgpr_count 2
  .amdhsa_user_sgpr_kernarg_segment_ptr 1
  .amdhsa_system_sgpr_workgroup_id_x 1
.end_amdhsa_kernel""")
open(opt['out'], 'w').write("\n".join(x.rstrip("\n") for x in o if x.strip()) + "\n")
```

```python
KN='standalone__ragged_sequences_packed_sequences__ragged_kernel'
def header(grid,block,lds):
    return f"""; @launch grid=({grid},1,1) block=({block},1,1) lds={lds}
.amdgcn_target "amdgcn-amd-amdhsa--gfx950"
.text
.globl {KN}
.p2align 8
.type {KN},@function
{KN}:
"""
def footer(vgpr=256,sgpr=102,accum=256):
    return f"""
.section .rodata,"a"
.p2align 6
.amdhsa_kernel {KN}
  .amdhsa_next_free_vgpr {vgpr}
  .amdhsa_next_free_sgpr {sgpr}
  .amdhsa_accum_offset {accum}
  .amdhsa_group_segment_fixed_size 0
  .amdhsa_kernarg_size 56
  .amdhsa_user_sgpr_count 2
  .amdhsa_user_sgpr_kernarg_segment_ptr 1
  .amdhsa_system_sgpr_workgroup_id_x 1
.end_amdhsa_kernel
"""
def stamp(i,real=False):
    return f"    s_mem{'real' if real else ''}time s[{60+2*i}:{61+2*i}]\n"
def stamp_flush(n,waves_per_wg,wsreg,wavereg,vt=250):
    s=stamp(n-1,True)
    s+="    s_waitcnt lgkmcnt(0)\n"
    s+=f"    s_mul_i32 s58, s2, {waves_per_wg}\n    s_add_u32 s58, s58, s{wavereg}\n    s_mul_i32 s58, s58, {n*8}\n"
    s+=f"    s_mov_b64 exec, 1\n    v_mov_b32 v{vt}, s58\n"
    for i in range(n):
        s+=f"    v_mov_b32 v{vt+2}, s{60+2*i}\n    v_mov_b32 v{vt+3}, s{61+2*i}\n"
        s+=f"    global_store_dwordx2 v{vt}, v[{vt+2}:{vt+3}], s[{wsreg}:{wsreg+1}] offset:{i*8}\n    s_nop 1\n"
    return s
```

```python
import sys, math, struct
from common import KN, stamp, stamp_flush

opt = dict(D=3, rot=0, stamps=0, lsum='mfma', prio=1, headmap=0, pf=0, out='attn.s')
for a in sys.argv[1:]:
    k, v = a.split('=')
    opt[k] = v if k in ('lsum', 'out') else int(v)

CU = [0, 369, 582, 865, 1200]
SLOT = 17024
KP, VP = 1040, 1088
VOFF = 8320
LDS = 163840
LAREA = 161280
DUMMY = (4095 << 20) | 0x30000
C_EXP = math.log2(math.e) / math.sqrt(128.0)
def f32(x): return struct.unpack('<I', struct.pack('<f', x))[0]

def wg_list():
    w = []
    for i in range(6): w.append(dict(seg=0, q0=64*i, nqb=2, typ='S', j=i, nj=6))
    for i in range(2): w.append(dict(seg=1, q0=128*i, nqb=4-i, typ='N', j=i, nj=2))
    for i in range(3): w.append(dict(seg=2, q0=96*i, nqb=3, typ='N', j=i, nj=3))
    for i in range(4): w.append(dict(seg=3, q0=64*i, nqb=2, typ='S', j=i, nj=5))
    w.append(dict(seg=3, q0=256, nqb=3, typ='N', j=4, nj=5))
    return w

def rotl(l, k):
    if not l: return l
    k %= len(l)
    return l[k:] + l[:k]

def records():
    recs = []
    for w in wg_list():
        s0 = CU[w['seg']]; L = CU[w['seg']+1] - s0; nt = (L + 31)//32; tail = nt - 1
        nv = L - 32*tail
        nq = min(32*w['nqb'], L - w['q0'])
        r = opt['rot']
        if w['typ'] == 'S':
            nx = 6
            X = rotl(list(range(nx)), r*w['j'])
            Y = [tail] + rotl(list(range(nx, tail)), r*w['j'])
            sx = [(i % 4)*SLOT for i in range(len(X))]
            sy = [(4 + i % 4)*SLOT for i in range(len(Y))]
            qb = 8*SLOT
        else:
            X = [tail] + rotl(list(range(tail)), r*w['j']*(tail//w['nj']))
            Y = []
            ns = 7 if w['nqb'] == 4 else 8
            sx = [(i % ns)*SLOT for i in range(len(X))]
            sy = []
            qb = ns*SLOT
        G = len(X)
        ld = [s0*4096, (L-1)*4096+256, (s0+w['q0'])*4096, (nq-1)*4096+256, w['nqb'], qb, G, 0]
        for i in range(12):
            ld.append((X[i] << 20 | sx[i]) if i < len(X) else DUMMY)
            ld.append((Y[i] << 20 | sy[i]) if i < len(Y) else DUMMY)
        recs.append(ld)
        for c in range(4):
            if w['typ'] == 'S':
                b = c & 1; h = c >> 1
                T, S = (X, sx) if h == 0 else (Y, sy)
                mode = 1 + h
                xw = (4*h + b)*SLOT
                xr = (4*(1-h) + b)*SLOT
                lw = LAREA + c*256; lr = LAREA + (c ^ 2)*256
                busy = {sx[-1], sy[-1]}
            else:
                b = c; T, S = X, sx; mode = 0
                xw = xr = c*SLOT; lw = lr = LAREA
                busy = {sx[-1]}
                if b >= w['nqb']: T = []
            free = [k*SLOT for k in range(7) if k*SLOT not in busy]
            rows = min(32, L - w['q0'] - 32*b) if T else 1
            j = [(s0 + w['q0'] + 32*b)*4096, (rows-1)*4096+256, qb + b*8320, len(T),
                 nv if (T and T[0] == tail) else 32, mode, xw, xr,
                 G - len(T), s0*4096, (L-1)*4096+256, L, free[c] + VOFF, lw, lr, 0]
            sl = list(S[:len(T)]) if T else []
            sl += [0]*(16 - len(sl))
            recs.append(j + sl)
    return recs

vKL, vVL, vK, vV, vX16, vTW, vTR, vST = 1, 2, 3, 4, 5, 6, 10, 11
vL, vA, vP, vT = 12, 16, 20, 28
vS = [32, 48]
vO, vQ, vKF, vVF = 64, 128, 160, 192
sC, sEND, sSA, sSB = 60, 61, 62, 63
if opt['stamps']:
    sC, sEND, sSA, sSB = 96, 97, 98, 99
def r(a, n): return f"v[{a}:{a+n-1}]"
NST = 10
def st(i, real=False): return stamp(i, real) if opt['stamps'] else ""

o = []
A = o.append
A(f"; @launch grid=(256,1,1) block=(512,1,1) lds={LDS}")
A('.amdgcn_target "amdgcn-amd-amdhsa--gfx950"')
A(f".text\n.globl {KN}\n.p2align 8\n.type {KN},@function\n{KN}:")
A(st(0, True) + st(1))
A("""    s_cmp_ge_u32 s2, 256
    s_cbranch_scc1 L_end
    s_load_dwordx4 s[4:7], s[0:1], 0
    s_load_dwordx2 s[8:9], s[0:1], 16
    s_load_dwordx2 s[10:11], s[0:1], 32
    v_lshrrev_b32 v1, 6, v0
    s_getpc_b64 s[12:13]
L_pc:
    v_readfirstlane_b32 s14, v1
    s_bfe_u32 s3, s2, 0x40003
    s_mul_i32 s3, s3, 5
    v_and_b32 v0, 63, v0
    s_sub_u32 s15, s14, 3
    s_max_i32 s15, s15, 0
    s_add_u32 s3, s3, s15
    s_lshl_b32 s3, s3, 7
    s_add_u32 s3, s3, L_table-L_pc
    s_add_u32 s12, s12, s3
    s_addc_u32 s13, s13, 0
    s_load_dwordx16 s[16:31], s[12:13], 0
    s_load_dwordx16 s[32:47], s[12:13], 64""")
if opt['stamps']:
    A("    s_load_dwordx2 s[94:95], s[0:1], 48")
if opt['headmap'] == 0:
    A("""    s_and_b32 s15, s2, 7
    s_lshl_b32 s15, s15, 9
    s_lshr_b32 s3, s2, 7
    s_lshl_b32 s3, s3, 8
    s_add_u32 s15, s15, s3""")
else:
    A("""    s_and_b32 s15, s2, 7
    s_lshl_b32 s15, s15, 8
    s_lshr_b32 s3, s2, 7
    s_lshl_b32 s3, s3, 11
    s_add_u32 s15, s15, s3""")
A("""    s_mov_b32 s51, 0x20000
    s_mov_b32 s55, 0x20000
    s_mov_b32 s59, 0x20000
    s_cmp_ge_u32 s14, 4
    s_cbranch_scc1 L_compute""")
D = opt['D']
A(f"""    v_lshrrev_b32 v1, 4, v0
    v_and_b32 v2, 15, v0
    v_lshlrev_b32 v3, 14, v1
    v_lshl_add_u32 v3, v2, 4, v3
    s_lshl_b32 s3, s14, 12
    v_add_u32 v3, s3, v3
    v_and_b32 v1, 32, v0
    v_lshlrev_b32 v1, 2, v1
    v_xor_b32 v1, v1, v3
    v_add_u32 v2, 0x10000, v1
    v_add_u32 v4, 0x10000, v3
    s_mul_i32 s80, s14, {KP}
    s_mul_i32 s81, s14, {VP}
    s_add_u32 s81, s81, {VOFF}
    s_waitcnt lgkmcnt(0)""")
A(st(2))
A(f"""    s_add_u32 s18, s18, s15
    s_add_u32 s48, s4, s18
    s_addc_u32 s49, s5, 0
    s_mov_b32 s50, s19
    s_add_u32 s16, s16, s15
    s_add_u32 s52, s6, s16
    s_addc_u32 s53, s7, 0
    s_mov_b32 s54, s17
    s_add_u32 m0, s21, s80
    s_mov_b32 s82, 0
L_ldq:
    buffer_load_dwordx4 v1, s[48:51], s82 offen lds
    s_add_u32 m0, m0, {4*KP}
    s_sub_u32 s20, s20, 1
    buffer_load_dwordx4 v2, s[48:51], s82 offen lds
    s_add_u32 m0, m0, {4*KP}
    s_add_u32 s82, s82, 0x20000
    s_cmp_lg_u32 s20, 0
    s_cbranch_scc1 L_ldq
    s_add_u32 s56, s8, s16
    s_addc_u32 s57, s9, 0
    s_mov_b32 s58, s17
    s_mov_b32 s83, 0
    s_branch L_ldk
L_ldloop:
    s_cmp_lt_u32 s83, {D}
    s_cbranch_scc1 L_ldv
    s_waitcnt vmcnt({8*(D-1)})
    s_barrier
    s_cmp_gt_u32 s83, s22
    s_cbranch_scc1 L_ldtail
L_ldv:
    s_add_u32 m0, s84, s81
    s_nop 0
    buffer_load_dwordx4 v3, s[56:59], s85 offen lds
    s_add_u32 m0, m0, {4*VP}
    s_nop 0
    buffer_load_dwordx4 v4, s[56:59], s85 offen lds
    s_add_u32 m0, s86, s81
    s_nop 0
    buffer_load_dwordx4 v3, s[56:59], s87 offen lds
    s_add_u32 m0, m0, {4*VP}
    s_nop 0
    buffer_load_dwordx4 v4, s[56:59], s87 offen lds
L_ldk:
    s_lshl_b32 m0, s83, 1
    s_add_u32 s83, s83, 1
    s_movrels_b64 s[88:89], s[24:25]
    s_and_b32 s84, s88, 0xfffff
    s_add_u32 m0, s84, s80
    s_lshr_b32 s85, s88, 20
    s_lshl_b32 s85, s85, 17
    buffer_load_dwordx4 v1, s[52:55], s85 offen lds
    s_add_u32 m0, m0, {4*KP}
    s_and_b32 s86, s89, 0xfffff
    buffer_load_dwordx4 v2, s[52:55], s85 offen lds
    s_add_u32 m0, s86, s80
    s_lshr_b32 s87, s89, 20
    s_lshl_b32 s87, s87, 17
    buffer_load_dwordx4 v1, s[52:55], s87 offen lds
    s_add_u32 m0, m0, {4*KP}
    s_nop 0
    buffer_load_dwordx4 v2, s[52:55], s87 offen lds
    s_branch L_ldloop
L_ldtail:""")
A(st(3))
for k in range(D-2, -1, -1):
    A(f"    s_waitcnt vmcnt({8*k})\n    s_barrier")
if opt['stamps']:
    for i in range(4, NST-1): A(st(i))
    A(stamp_flush(NST, 8, 94, 14, vt=230))
A("L_end:\n    s_endpgm")

A("L_compute:")
if opt['prio']: A(f"    s_setprio {opt['prio']}")
A(f"""    v_and_b32 v28, 3, v0
    v_mul_u32_u24 v{vKL}, {KP}, v28
    v_bfe_u32 v28, v0, 4, 1
    v_mul_u32_u24 v29, {4*KP}, v28
    v_add_u32 v{vKL}, v{vKL}, v29
    v_bfe_u32 v29, v0, 2, 2
    v_lshl_add_u32 v{vKL}, v29, 8, v{vKL}
    v_mul_u32_u24 v{vVL}, {VP}, v29
    v_lshl_add_u32 v{vVL}, v28, 4, v{vVL}
    v_lshrrev_b32 v30, 5, v0
    v_lshl_add_u32 v{vVL}, v30, 8, v{vVL}
    v_bfe_u32 v31, v0, 3, 1
    v_xor_b32 v31, v31, v30
    v_lshl_add_u32 v{vKL}, v31, 7, v{vKL}
    v_and_b32 v31, 1, v0
    v_lshl_add_u32 v{vVL}, v31, 5, v{vVL}
    v_bfe_u32 v31, v0, 1, 1
    v_lshl_add_u32 v{vVL}, v31, 3, v{vVL}
    v_and_b32 v29, 1, v29
    v_cmp_eq_u32 vcc, v28, v29
    v_mov_b32 v29, 0x3f803f80
    v_lshlrev_b32 v{vX16}, 4, v0
    v_cndmask_b32 v{vA}, 0, v29, vcc
    v_cndmask_b32 v{vA+1}, 0, v29, vcc
    v_cndmask_b32 v{vA+2}, 0, v29, vcc
    v_cndmask_b32 v{vA+3}, 0, v29, vcc
    v_and_b32 v28, 7, v0
    v_lshlrev_b32 v29, 1, v30
    v_xor_b32 v29, v29, v28
    v_and_b32 v31, 31, v0
    v_lshlrev_b32 v31, 7, v31
    v_lshl_add_u32 v{vTW}, v29, 4, v31
    v_lshrrev_b32 v29, 3, v0
    v_xor_b32 v31, v29, v28
    v_lshlrev_b32 v31, 4, v31
    v_lshl_add_u32 v{vTR}, v29, 7, v31
    v_lshlrev_b32 v31, 4, v28
    v_lshl_add_u32 v{vST}, v29, 12, v31
    v_lshlrev_b32 v30, 2, v30
    s_mov_b32 s{sC}, {hex(f32(C_EXP))}""")
for i in range(64): A(f"    v_mov_b32 v{vO+i}, 0")
for i in range(4): A(f"    v_mov_b32 v{vL+i}, 0")
A("    v_mov_b32 v31, 0xff800000\n    s_waitcnt lgkmcnt(0)")
A(st(2))
A(f"""    s_cmp_eq_u32 s19, 0
    s_cbranch_scc1 L_end
    v_sub_u32 v29, s20, v30""")
def cimask(dst, vrem, vinf):
    s = ""
    for i in range(16):
        s += f"    v_cmp_ge_i32 vcc, {(i & 3) + 8*(i >> 2)}, v{vrem}\n    s_nop 1\n    v_cndmask_b32 v{dst+i}, 0, v{vinf}, vcc\n"
    return s
A(cimask(vS[1], 29, 31))
A(f"""    v_add_u32 v28, s18, v{vKL}
    v_add_u32 v{vK}, s32, v{vKL}
    v_add_u32 v{vV}, s32, v{vVL}
    v_add_u32 v{vTW}, s23, v{vTW}
    v_add_u32 v{vTR}, s23, v{vTR}
    v_xor_b32 v{vTW+1}, 16, v{vTW}
    v_xor_b32 v{vTW+2}, 64, v{vTW}
    v_xor_b32 v{vTW+3}, 0x50, v{vTW}
    s_add_u32 s16, s16, s15
    s_add_u32 s48, s10, s16
    s_addc_u32 s49, s11, 0
    s_mov_b32 s50, s17
    s_add_u32 s{sEND}, s19, 2
    s_mov_b32 s{sSB}, s33
    s_mov_b32 m0, 2
    s_barrier""")
A(st(3))
def kread(j): return f"ds_read_b128 {r(vKF+4*j,4)}, v{vK} offset:{16*j}"
def vread(a, b, s): return f"ds_read_b64_tr_b16 {r(vVF+16*a+4*b+2*s,2)}, v{vV} offset:{VOFF + a*4*VP + s*512 + b*64}"
def qk(j, dst, c=None):
    c = c if c is not None else ('0' if j == 0 else r(dst, 16))
    return f"v_mfma_f32_32x32x16_bf16 {r(dst,16)}, {r(vKF+4*j,4)}, {r(vQ+4*j,4)}, {c}"
def pv(a, b): return f"v_mfma_f32_32x32x16_bf16 {r(vO+16*b,16)}, {r(vVF+16*a+4*b,4)}, {r(vP+4*a,4)}, {r(vO+16*b,16)}"
def lm(a): return f"v_mfma_f32_16x16x32_bf16 {r(vL,4)}, {r(vA,4)}, {r(vP+4*a,4)}, {r(vL,4)}"
for j in range(8):
    A(f"    ds_read_b128 {r(vQ+4*j,4)}, v28 offset:{16*j}\n    {kread(j)}")
for j in range(8):
    if j < 7: A(f"    s_waitcnt lgkmcnt({14-2*j})")
    else: A("    s_waitcnt lgkmcnt(0)")
    A("    " + qk(j, vS[0], r(vS[1], 16) if j == 0 else None))
A(f"    v_add_u32 v{vK}, s33, v{vKL}\n    s_barrier")
A(st(4))
for j in range(8): A("    " + kread(j))
for b in range(4):
    for s in range(2): A("    " + vread(0, b, s))
A("    s_nop 1")

def body(cur, nxt, sK, sV, last_branch):
    S = vS[cur]
    M = lambda e: f"v_mul_f32 v{S+e}, s{sC}, v{S+e}"
    X = lambda e: f"v_exp_f32 v{S+e}, v{S+e}"
    Cv = lambda p: f"v_cvt_pk_bf16_f32 v{vP+p}, v{S+2*p}, v{S+2*p+1}"
    R1 = [vread(1, b, s) for b in range(4) for s in range(2)]
    R0 = [vread(0, b, s) for b in range(4) for s in range(2)]
    Kr = [kread(j) for j in range(8)]
    N = vS[nxt]
    seq = []
    seq += ["s_waitcnt lgkmcnt(12)", qk(0, N), M(0), M(1), X(0), M(2), X(1)]
    seq += [qk(1, N), M(3), X(2), R1[0], R1[1], Cv(0)]
    seq += [qk(2, N), M(4), X(3), M(5), X(4)]
    seq += [qk(3, N), M(6), X(5), Cv(1), "s_waitcnt lgkmcnt(10)"]
    seq += [qk(4, N), R1[2], R1[3], M(7), X(6), Cv(2)]
    seq += [qk(5, N), M(8), X(7), R1[4], R1[5]]
    seq += [qk(6, N), M(9), X(8), Cv(3), R1[6], R1[7]]
    seq += [qk(7, N), M(10), X(9), M(11), X(10), "s_waitcnt lgkmcnt(8)"]
    seq += [pv(0, 0), M(12), X(11), M(13), X(12)]
    seq += [pv(0, 1), M(14), X(13), M(15), X(14)]
    seq += [pv(0, 2), Cv(4), X(15), Cv(5), Cv(6), f"s_movrels_b32 s{sK}, s32"]
    seq += [pv(0, 3), Cv(7), "s_waitcnt lgkmcnt(0)", "s_barrier", f"v_add_u32 v{vK}, s{sK}, v{vKL}", f"v_add_u32 v{vV}, s{sV}, v{vVL}"]
    seq += [lm(0), Kr[0], Kr[1]]
    seq += [pv(1, 0), Kr[2], Kr[3], Kr[4], Kr[5], "s_add_u32 m0, m0, 1"]
    seq += [pv(1, 1), Kr[6], Kr[7], R0[0], R0[1], f"s_cmp_lt_u32 m0, s{sEND}"]
    seq += [pv(1, 2), R0[2], R0[3], R0[4], R0[5]]
    seq += [pv(1, 3), R0[6], R0[7]]
    seq += [lm(1), last_branch]
    return "\n".join("    " + x for x in seq)
A("L_loop:")
A(body(0, 1, sSA, sSB, "s_cbranch_scc0 L_done"))
A(body(1, 0, sSB, sSA, "s_cbranch_scc1 L_loop"))
A("L_done:")
A(st(5))

def W(h):
    src = vO + 32*(1-h)
    s = f"    v_add_u32 v28, s22, v{vX16}\n    v_lshrrev_b32 v30, 2, v{vX16}\n    v_add_u32 v29, s23, v{vX16}\n    v_add_u32 v31, s30, v30\n    v_add_u32 v30, s29, v30\n"
    s += "    s_nop 7\n" if h == 0 else "    s_nop 3\n"
    for k in range(8):
        s += f"    ds_write_b128 v28, {r(src+4*k,4)} offset:{1024*k}\n"
    s += f"    ds_write_b32 v30, v{vL}\n    s_waitcnt lgkmcnt(0)\n"
    s += f"L_pb{h}:\n    s_barrier\n    s_sub_u32 s24, s24, 1\n    s_cbranch_scc0 L_pb{h}\n"
    s += f"    ds_read_b32 v31, v31\n"
    for k in range(8):
        s += f"    ds_read_b128 {r(vKF+4*k,4)}, v29 offset:{1024*k}\n"
    dst = vO + 32*h
    s += f"    s_waitcnt lgkmcnt(8)\n    v_add_f32 v{vL}, v{vL}, v31\n"
    for k in range(8):
        s += f"    s_waitcnt lgkmcnt({7-k})\n"
        for u in range(2):
            s += f"    v_pk_add_f32 {r(dst+4*k+2*u,2)}, {r(dst+4*k+2*u,2)}, {r(vKF+4*k+2*u,2)}\n"
    return s
def CHK():
    return f"""    v_cmp_lt_f32 vcc, {hex(f32(2.0**-30))}, v{vL}
    v_cmp_gt_f32 s[82:83], v{vA+2}, v{vL}
    s_and_b64 vcc, vcc, s[82:83]
    s_cmp_eq_u64 vcc, -1
    s_cbranch_scc0 L_fallback
"""
def F(h):
    src = vO + 32*h
    s = f"    v_rcp_f32 v28, v{vL}\n    s_nop 0\n"
    for q in range(4):
        for k in range(4*q, 4*q+4):
            s += f"    v_pk_mul_f32 {r(src+2*k,2)}, {r(src+2*k,2)}, v[28:29] op_sel_hi:[1,0]\n"
        for k in range(4*q, 4*q+4):
            s += f"    v_cvt_pk_bf16_f32 v{vVF+k}, v{src+2*k}, v{src+2*k+1}\n"
        tw = vTW + (q >> 1)*2 + (q & 1)
        s += f"    ds_write_b128 v{tw}, {r(vVF+4*q,4)} offset:{4096*h}\n"
    s += "    s_waitcnt lgkmcnt(0)\n"
    dst = vKF + 16*h
    for i in range(4):
        s += f"    ds_read_b128 {r(dst+4*i,4)}, v{vTR} offset:{4096*h + 1024*i}\n"
    for i in range(4):
        s += f"    s_waitcnt lgkmcnt({3-i})\n    buffer_store_dwordx4 {r(dst+4*i,4)}, v{vST}, s[48:51], s{84+i} offen offset:{128*h}\n"
    return s
A(f"""    s_mov_b32 s84, 0
    s_mov_b32 s85, 0x8000
    s_mov_b32 s86, 0x10000
    s_mov_b32 s87, 0x18000
    s_cmp_eq_u32 s21, 2
    s_cbranch_scc1 L_h1
    s_cmp_eq_u32 s21, 0
    s_cbranch_scc1 L_chk0n""")
A(W(0))
A("    s_branch L_chk0\nL_chk0n:\n    s_nop 7\n    s_waitcnt lgkmcnt(0)\nL_chk0:")
A(f"    v_mov_b32 v{vA+2}, {hex(f32(2.0**30))}")
A(st(6))
A(CHK())
A("L_f0:")
A(F(0))
A("    s_cmp_eq_u32 s21, 0\n    s_cbranch_scc1 L_f1\n    s_branch L_fin")
A("L_h1:")
A(W(1))
A(f"    v_mov_b32 v{vA+2}, {hex(f32(2.0**30))}")
A(st(6))
A(CHK())
A("L_f1:")
A(F(1))
A("L_fin:")
if opt['stamps']:
    A(st(7) + "    s_waitcnt vmcnt(0)\n" + st(8))
    A(stamp_flush(NST, 8, 94, 14, vt=230))
A("    s_endpgm")

A(f"""L_fallback:
    s_add_u32 s25, s25, s15
    s_add_u32 s52, s6, s25
    s_addc_u32 s53, s7, 0
    s_mov_b32 s54, s26
    s_add_u32 s56, s8, s25
    s_addc_u32 s57, s9, 0
    s_mov_b32 s58, s26
    v_mov_b32 v{vA+2}, v{vA}
    v_and_b32 v28, 31, v0
    v_lshlrev_b32 v28, 12, v28
    v_lshrrev_b32 v30, 5, v0
    v_lshl_add_u32 v224, v30, 7, v28
    v_lshlrev_b32 v30, 2, v30
    v_lshrrev_b32 v28, 4, v0
    v_lshlrev_b32 v28, 14, v28
    v_and_b32 v29, 15, v0
    v_lshl_add_u32 v225, v29, 4, v28
    v_mov_b32 v31, 0xff800000
    v_mov_b32 v226, 0xff800000
    s_sub_u32 s88, s28, {VOFF}
    v_add_u32 v{vV}, s88, v{vVL}
    s_mov_b32 s90, 0
L_fb_pass:
    s_mov_b32 s88, 0
    s_mov_b32 s89, s27
L_fb_tile:""")
for j in range(8): A(f"    buffer_load_dwordx4 {r(vKF+4*j,4)}, v224, s[52:55], s88 offen offset:{16*j}")
A(f"    v_sub_u32 v29, s89, v30")
A(cimask(vS[1], 29, 31))
A("    s_waitcnt vmcnt(0)")
for j in range(8): A("    " + qk(j, vS[0], r(vS[1], 16) if j == 0 else None))
A("    s_cmp_eq_u32 s90, 0\n    s_cbranch_scc0 L_fb_p2\n    s_nop 15")
for i in range(16): A(f"    v_max_f32 v226, v226, v{vS[0]+i}")
A("    s_branch L_fb_next\nL_fb_p2:")
for p in range(8):
    A(f"    s_add_u32 m0, s28, {p*VP}\n    s_add_u32 s91, s88, {((p & 3) + 16*(p >> 2))*4096}\n    buffer_load_dwordx4 v225, s[56:59], s91 offen lds")
A("    s_nop 7")
for e in range(16): A(f"    v_fma_f32 v{vS[0]+e}, v{vS[0]+e}, s{sC}, -v226")
for e in range(16): A(f"    v_exp_f32 v{vS[0]+e}, v{vS[0]+e}")
A("    s_nop 0")
for p in range(8): A(f"    v_cvt_pk_bf16_f32 v{vP+p}, v{vS[0]+2*p}, v{vS[0]+2*p+1}")
A("    s_waitcnt vmcnt(0)")
for a in range(2):
    for b in range(4):
        for s in range(2): A("    " + vread(a, b, s))
A("    s_waitcnt lgkmcnt(0)")
for a in range(2):
    for b in range(4): A("    " + pv(a, b))
    A("    " + lm(a))
A(f"""L_fb_next:
    s_add_u32 s88, s88, 0x20000
    s_sub_u32 s89, s89, 32
    s_cmp_gt_i32 s89, 0
    s_cbranch_scc1 L_fb_tile
    s_cmp_eq_u32 s90, 0
    s_cbranch_scc0 L_fb_out
    s_mov_b32 s90, 1
    v_mov_b32 v227, v226
    s_nop 1
    v_permlane32_swap_b32 v227, v226
    v_max_f32 v226, v226, v227
    v_mul_f32 v226, s{sC}, v226""")
for i in range(64): A(f"    v_mov_b32 v{vO+i}, 0")
for i in range(4): A(f"    v_mov_b32 v{vL+i}, 0")
A("""    s_branch L_fb_pass
L_fb_out:
    s_nop 15
    s_cmp_eq_u32 s21, 2
    s_cbranch_scc1 L_f1
    s_branch L_f0""")
A(".p2align 7\nL_table:")
for rec in records():
    A("    .long " + ", ".join(hex(x) for x in rec))
A(f""".section .rodata,"a"
.p2align 6
.amdhsa_kernel {KN}
  .amdhsa_next_free_vgpr 256
  .amdhsa_next_free_sgpr 102
  .amdhsa_accum_offset 256
  .amdhsa_group_segment_fixed_size 0
  .amdhsa_kernarg_size 56
  .amdhsa_user_sgpr_count 2
  .amdhsa_user_sgpr_kernarg_segment_ptr 1
  .amdhsa_system_sgpr_workgroup_id_x 1
.end_amdhsa_kernel""")
open(opt['out'], 'w').write("\n".join(x.rstrip("\n") for x in o if x.strip()) + "\n")
```

```python
import sys, math, struct
from common import KN, stamp, stamp_flush, dbg_flush

opt = dict(D=3, rot=0, stamps=0, lsum='mfma', prio=1, headmap=0, pf=0, pad=0, chase=0, lq='', lk='', stx='', out='attn.s')
for a in sys.argv[1:]:
    k, v = a.split('=')
    opt[k] = v.replace('+', ' ') if k in ('lsum', 'out', 'lq', 'lk', 'stx') else int(v)

CU = [0, 369, 582, 865, 1200]
SLOT = 17024
KP, VP = 1040, 1088
VOFF = 8320
LDS = 163840
LAREA = 161280
DUMMY = (4095 << 20) | 0x30000
C_EXP = math.log2(math.e) / math.sqrt(128.0)
def f32(x): return struct.unpack('<I', struct.pack('<f', x))[0]

def wg_list():
    w = []
    for i in range(6): w.append(dict(seg=0, q0=64*i, nqb=2, typ='S', j=i, nj=6))
    for i in range(2): w.append(dict(seg=1, q0=128*i, nqb=4-i, typ='N', j=i, nj=2))
    for i in range(3): w.append(dict(seg=2, q0=96*i, nqb=3, typ='N', j=i, nj=3))
    for i in range(4): w.append(dict(seg=3, q0=64*i, nqb=2, typ='S', j=i, nj=5))
    w.append(dict(seg=3, q0=256, nqb=3, typ='N', j=4, nj=5))
    return w

def rotl(l, k):
    if not l: return l
    k %= len(l)
    return l[k:] + l[:k]

def records():
    recs = []
    for w in wg_list():
        s0 = CU[w['seg']]; L = CU[w['seg']+1] - s0; nt = (L + 31)//32; tail = nt - 1
        nv = L - 32*tail
        nq = min(32*w['nqb'], L - w['q0'])
        r = opt['rot']
        if w['typ'] == 'S':
            nx = 6
            X = rotl(list(range(nx)), r*w['j'])
            Y = [tail] + rotl(list(range(nx, tail)), r*w['j'])
            sx = [(i % 4)*SLOT for i in range(len(X))]
            sy = [(4 + i % 4)*SLOT for i in range(len(Y))]
            qb = 8*SLOT
        else:
            X = [tail] + rotl(list(range(tail)), r*w['j']*(tail//w['nj']))
            Y = []
            ns = 7 if w['nqb'] == 4 else 8
            sx = [(i % ns)*SLOT for i in range(len(X))]
            sy = []
            qb = ns*SLOT
        G = len(X)
        ld = [s0*4096, (L-1)*4096+256, (s0+w['q0'])*4096, (nq-1)*4096+256, w['nqb'], qb, G, 0]
        for i in range(12):
            ld.append((X[i] << 20 | sx[i]) if i < len(X) else DUMMY)
            ld.append((Y[i] << 20 | sy[i]) if i < len(Y) else DUMMY)
        recs.append(ld)
        for c in range(4):
            if w['typ'] == 'S':
                b = c & 1; h = c >> 1
                T, S = (X, sx) if h == 0 else (Y, sy)
                mode = 1 + h
                xw = (4*h + b)*SLOT
                xr = (4*(1-h) + b)*SLOT
                lw = LAREA + c*256; lr = LAREA + (c ^ 2)*256
                busy = {sx[-1], sy[-1]}
            else:
                b = c; T, S = X, sx; mode = 0
                xw = xr = c*SLOT; lw = lr = LAREA
                busy = {sx[-1]}
                if b >= w['nqb']: T = []
            free = [k*SLOT for k in range(7) if k*SLOT not in busy]
            rows = min(32, L - w['q0'] - 32*b) if T else 1
            j = [(s0 + w['q0'] + 32*b)*4096, (rows-1)*4096+256, qb + b*8320, len(T),
                 nv if (T and T[0] == tail) else 32, mode, xw, xr,
                 G - len(T), s0*4096, (L-1)*4096+256, L, free[c] + VOFF, lw, lr, 0]
            sl = list(S[:len(T)]) if T else []
            sl += [0]*(16 - len(sl))
            recs.append(j + sl)
    return recs

vKL, vVL, vK, vV, vX16, vTW, vTR, vST = 1, 2, 3, 4, 5, 6, 10, 11
vL, vA, vP, vT = 12, 16, 20, 28
vS = [32, 48]
vO, vQ, vKF, vVF = 64, 128, 160, 192
sC, sEND, sSA, sSB = 60, 61, 62, 63
if opt['stamps']:
    sC, sEND, sSA, sSB = 96, 97, 98, 99
def r(a, n): return f"v[{a}:{a+n-1}]"
NST = 10
def st(i, real=False): return stamp(i, real) if opt['stamps'] else ""

o = []
A = o.append
A(f"; @launch grid=(256,1,1) block=(512,1,1) lds={LDS}")
A('.amdgcn_target "amdgcn-amd-amdhsa--gfx950"')
A(f".text\n.globl {KN}\n.p2align 8\n.type {KN},@function\n{KN}:")
A(st(0, True) + st(1))
A("""    s_cmp_ge_u32 s2, 256
    s_cbranch_scc1 L_end
    s_load_dwordx4 s[4:7], s[0:1], 0
    s_load_dwordx2 s[8:9], s[0:1], 16
    s_load_dwordx2 s[10:11], s[0:1], 32
    v_lshrrev_b32 v1, 6, v0
    s_getpc_b64 s[12:13]
L_pc:
    v_readfirstlane_b32 s14, v1
    s_bfe_u32 s3, s2, 0x40003
    s_mul_i32 s3, s3, 5
    v_and_b32 v0, 63, v0
    s_sub_u32 s15, s14, 3
    s_max_i32 s15, s15, 0
    s_add_u32 s3, s3, s15
    s_lshl_b32 s3, s3, 7
    s_add_u32 s3, s3, L_table-L_pc
    s_add_u32 s12, s12, s3
    s_addc_u32 s13, s13, 0
    s_load_dwordx16 s[16:31], s[12:13], 0
    s_load_dwordx16 s[32:47], s[12:13], 64""")
if opt['stamps']:
    A(f"    s_load_dwordx2 s[94:95], s[0:1], {40 if opt['stamps'] == 2 else 48}")
if opt['headmap'] == 0:
    A("""    s_and_b32 s15, s2, 7
    s_lshl_b32 s15, s15, 9
    s_lshr_b32 s3, s2, 7
    s_lshl_b32 s3, s3, 8
    s_add_u32 s15, s15, s3""")
else:
    A("""    s_and_b32 s15, s2, 7
    s_lshl_b32 s15, s15, 8
    s_lshr_b32 s3, s2, 7
    s_lshl_b32 s3, s3, 11
    s_add_u32 s15, s15, s3""")
A("""    s_mov_b32 s51, 0x20000
    s_mov_b32 s55, 0x20000
    s_mov_b32 s59, 0x20000
    s_cmp_ge_u32 s14, 4
    s_cbranch_scc1 L_compute""")
D = opt['D']
A(f"""    v_lshrrev_b32 v1, 4, v0
    v_and_b32 v2, 15, v0
    v_lshlrev_b32 v3, 14, v1
    v_lshl_add_u32 v3, v2, 4, v3
    s_lshl_b32 s3, s14, 12
    v_add_u32 v3, s3, v3
    v_and_b32 v1, 32, v0
    v_lshlrev_b32 v1, 2, v1
    v_xor_b32 v1, v1, v3
    v_add_u32 v2, 0x10000, v1
    v_add_u32 v4, 0x10000, v3
    s_mul_i32 s80, s14, {KP}
    s_mul_i32 s81, s14, {VP}
    s_add_u32 s81, s81, {VOFF}
    s_waitcnt lgkmcnt(0)""")
A(st(2))
A(f"""    s_add_u32 s18, s18, s15
    s_add_u32 s48, s4, s18
    s_addc_u32 s49, s5, 0
    s_mov_b32 s50, s19
    s_add_u32 s16, s16, s15
    s_add_u32 s52, s6, s16
    s_addc_u32 s53, s7, 0
    s_mov_b32 s54, s17
    s_add_u32 m0, s21, s80
    s_mov_b32 s82, 0
L_ldq:
    buffer_load_dwordx4 v1, s[48:51], s82 offen {opt['lq']} lds
    s_add_u32 m0, m0, {4*KP}
    s_sub_u32 s20, s20, 1
    buffer_load_dwordx4 v2, s[48:51], s82 offen {opt['lq']} lds
    s_add_u32 m0, m0, {4*KP}
    s_add_u32 s82, s82, 0x20000
    s_cmp_lg_u32 s20, 0
    s_cbranch_scc1 L_ldq
    s_add_u32 s56, s8, s16
    s_addc_u32 s57, s9, 0
    s_mov_b32 s58, s17
    s_mov_b32 s83, 0
    s_branch L_ldk
L_ldloop:
    s_cmp_lt_u32 s83, {D}
    s_cbranch_scc1 L_ldv
    s_waitcnt vmcnt({8*(D-1)})
    s_barrier
    s_cmp_gt_u32 s83, s22
    s_cbranch_scc1 L_ldtail
L_ldv:
    s_add_u32 m0, s84, s81
    s_nop 0
    buffer_load_dwordx4 v3, s[56:59], s85 offen {opt['lk']} lds
    s_add_u32 m0, m0, {4*VP}
    s_nop 0
    buffer_load_dwordx4 v4, s[56:59], s85 offen {opt['lk']} lds
    s_add_u32 m0, s86, s81
    s_nop 0
    buffer_load_dwordx4 v3, s[56:59], s87 offen {opt['lk']} lds
    s_add_u32 m0, m0, {4*VP}
    s_nop 0
    buffer_load_dwordx4 v4, s[56:59], s87 offen {opt['lk']} lds
L_ldk:
    s_lshl_b32 m0, s83, 1
    s_add_u32 s83, s83, 1
    s_movrels_b64 s[88:89], s[24:25]
    s_and_b32 s84, s88, 0xfffff
    s_add_u32 m0, s84, s80
    s_lshr_b32 s85, s88, 20
    s_lshl_b32 s85, s85, 17
    buffer_load_dwordx4 v1, s[52:55], s85 offen {opt['lk']} lds
    s_add_u32 m0, m0, {4*KP}
    s_and_b32 s86, s89, 0xfffff
    buffer_load_dwordx4 v2, s[52:55], s85 offen {opt['lk']} lds
    s_add_u32 m0, s86, s80
    s_lshr_b32 s87, s89, 20
    s_lshl_b32 s87, s87, 17
    buffer_load_dwordx4 v1, s[52:55], s87 offen {opt['lk']} lds
    s_add_u32 m0, m0, {4*KP}
    s_nop 0
    buffer_load_dwordx4 v2, s[52:55], s87 offen {opt['lk']} lds
    s_branch L_ldloop
L_ldtail:""")
A(st(3))
for k in range(D-2, -1, -1):
    A(f"    s_waitcnt vmcnt({8*k})\n    s_barrier")
if opt['stamps']:
    for i in range(4, NST-1): A(st(i))
    A(stamp_flush(NST, 8, 94, 14, vt=230) if opt['stamps'] == 1 else dbg_flush(NST, 94, [(2, 11, 0), (3, 12, 0)]))
A("L_end:\n    s_endpgm")

A("L_compute:")
if opt['prio']: A(f"    s_setprio {opt['prio']}")
A(f"""    v_and_b32 v28, 3, v0
    v_mul_u32_u24 v{vKL}, {KP}, v28
    v_bfe_u32 v28, v0, 4, 1
    v_mul_u32_u24 v29, {4*KP}, v28
    v_add_u32 v{vKL}, v{vKL}, v29
    v_bfe_u32 v29, v0, 2, 2
    v_lshl_add_u32 v{vKL}, v29, 8, v{vKL}
    v_mul_u32_u24 v{vVL}, {VP}, v29
    v_lshl_add_u32 v{vVL}, v28, 4, v{vVL}
    v_lshrrev_b32 v30, 5, v0
    v_lshl_add_u32 v{vVL}, v30, 8, v{vVL}
    v_bfe_u32 v31, v0, 3, 1
    v_xor_b32 v31, v31, v30
    v_lshl_add_u32 v{vKL}, v31, 7, v{vKL}
    v_and_b32 v31, 1, v0
    v_lshl_add_u32 v{vVL}, v31, 5, v{vVL}
    v_bfe_u32 v31, v0, 1, 1
    v_lshl_add_u32 v{vVL}, v31, 3, v{vVL}
    v_and_b32 v29, 1, v29
    v_cmp_eq_u32 vcc, v28, v29
    v_mov_b32 v29, 0x3f803f80
    v_lshlrev_b32 v{vX16}, 4, v0
    v_cndmask_b32 v{vA}, 0, v29, vcc
    v_cndmask_b32 v{vA+1}, 0, v29, vcc
    v_cndmask_b32 v{vA+2}, 0, v29, vcc
    v_cndmask_b32 v{vA+3}, 0, v29, vcc
    v_and_b32 v28, 7, v0
    v_lshlrev_b32 v29, 1, v30
    v_xor_b32 v29, v29, v28
    v_and_b32 v31, 31, v0
    v_lshlrev_b32 v31, 7, v31
    v_lshl_add_u32 v{vTW}, v29, 4, v31
    v_lshrrev_b32 v29, 3, v0
    v_xor_b32 v31, v29, v28
    v_lshlrev_b32 v31, 4, v31
    v_lshl_add_u32 v{vTR}, v29, 7, v31
    v_lshlrev_b32 v31, 4, v28
    v_lshl_add_u32 v{vST}, v29, 12, v31
    v_lshlrev_b32 v30, 2, v30
    s_mov_b32 s{sC}, {hex(f32(C_EXP))}""")
for i in range(64): A(f"    v_mov_b32 v{vO+i}, 0")
for i in range(4): A(f"    v_mov_b32 v{vL+i}, 0")
A("    v_mov_b32 v31, 0xff800000\n    s_waitcnt lgkmcnt(0)")
A(st(2))
A(f"""    s_cmp_eq_u32 s19, 0
    s_cbranch_scc1 L_end
    v_sub_u32 v29, s20, v30""")
def cimask(dst, vrem, vinf):
    s = ""
    for i in range(16):
        s += f"    v_cmp_ge_i32 vcc, {(i & 3) + 8*(i >> 2)}, v{vrem}\n    s_nop 1\n    v_cndmask_b32 v{dst+i}, 0, v{vinf}, vcc\n"
    return s
A(cimask(vS[1], 29, 31))
A(f"""    v_add_u32 v28, s18, v{vKL}
    v_add_u32 v{vK}, s32, v{vKL}
    v_add_u32 v{vV}, s32, v{vVL}
    v_add_u32 v{vTW}, s23, v{vTW}
    v_add_u32 v{vTR}, s23, v{vTR}
    v_xor_b32 v{vTW+1}, 16, v{vTW}
    v_xor_b32 v{vTW+2}, 64, v{vTW}
    v_xor_b32 v{vTW+3}, 0x50, v{vTW}
    s_add_u32 s16, s16, s15
    s_add_u32 s48, s10, s16
    s_addc_u32 s49, s11, 0
    s_mov_b32 s50, s17
    s_add_u32 s{sEND}, s19, 2
    s_mov_b32 s{sSB}, s33
    s_mov_b32 m0, 2
    s_barrier""")
A(st(3))
def kread(j): return f"ds_read_b128 {r(vKF+4*j,4)}, v{vK} offset:{16*j}"
def vread(a, b, s): return f"ds_read_b64_tr_b16 {r(vVF+16*a+4*b+2*s,2)}, v{vV} offset:{VOFF + a*4*VP + s*512 + b*64}"
def qk(j, dst, c=None):
    c = c if c is not None else ('0' if j == 0 else r(dst, 16))
    return f"v_mfma_f32_32x32x16_bf16 {r(dst,16)}, {r(vKF+4*j,4)}, {r(vQ+4*j,4)}, {c}"
def pv(a, b): return f"v_mfma_f32_32x32x16_bf16 {r(vO+16*b,16)}, {r(vVF+16*a+4*b,4)}, {r(vP+4*a,4)}, {r(vO+16*b,16)}"
def lm(a): return f"v_mfma_f32_16x16x32_bf16 {r(vL,4)}, {r(vA,4)}, {r(vP+4*a,4)}, {r(vL,4)}"
for j in range(8):
    A(f"    ds_read_b128 {r(vQ+4*j,4)}, v28 offset:{16*j}\n    {kread(j)}")
for j in range(8):
    if j < 7: A(f"    s_waitcnt lgkmcnt({14-2*j})")
    else: A("    s_waitcnt lgkmcnt(0)")
    A("    " + qk(j, vS[0], r(vS[1], 16) if j == 0 else None))
A(f"    v_add_u32 v{vK}, s33, v{vKL}\n    s_barrier")
A(st(4))
for j in range(8): A("    " + kread(j))
for b in range(4):
    for s in range(2): A("    " + vread(0, b, s))
A("    s_nop 1")

def body(cur, nxt, sK, sV, last_branch):
    S = vS[cur]
    M = lambda e: f"v_mul_f32 v{S+e}, s{sC}, v{S+e}"
    X = lambda e: f"v_exp_f32 v{S+e}, v{S+e}"
    Cv = lambda p: f"v_cvt_pk_bf16_f32 v{vP+p}, v{S+2*p}, v{S+2*p+1}"
    R1 = [vread(1, b, s) for b in range(4) for s in range(2)]
    R0 = [vread(0, b, s) for b in range(4) for s in range(2)]
    Kr = [kread(j) for j in range(8)]
    N = vS[nxt]
    seq = []
    seq += ["s_waitcnt lgkmcnt(12)", qk(0, N), M(0), M(1), X(0), M(2), X(1)]
    seq += [qk(1, N), M(3), X(2), R1[0], R1[1], Cv(0)]
    seq += [qk(2, N), M(4), X(3), M(5), X(4)]
    seq += [qk(3, N), M(6), X(5), Cv(1), "s_waitcnt lgkmcnt(10)"]
    seq += [qk(4, N), R1[2], R1[3], M(7), X(6), Cv(2)]
    seq += [qk(5, N), M(8), X(7), R1[4], R1[5]]
    seq += [qk(6, N), M(9), X(8), Cv(3), R1[6], R1[7]]
    seq += [qk(7, N), M(10), X(9), M(11), X(10), "s_waitcnt lgkmcnt(8)"]
    seq += [pv(0, 0), M(12), X(11), M(13), X(12)]
    seq += [pv(0, 1), M(14), X(13), M(15), X(14)]
    seq += [pv(0, 2), Cv(4), X(15), Cv(5), Cv(6), f"s_movrels_b32 s{sK}, s32"]
    seq += [pv(0, 3), Cv(7), "s_waitcnt lgkmcnt(0)", "s_barrier", f"v_add_u32 v{vK}, s{sK}, v{vKL}", f"v_add_u32 v{vV}, s{sV}, v{vVL}"]
    seq += [lm(0), Kr[0], Kr[1]]
    seq += [pv(1, 0), Kr[2], Kr[3], Kr[4], Kr[5], "s_add_u32 m0, m0, 1"]
    seq += [pv(1, 1), Kr[6], Kr[7], R0[0], R0[1], f"s_cmp_lt_u32 m0, s{sEND}"]
    seq += [pv(1, 2), R0[2], R0[3], R0[4], R0[5]]
    seq += [pv(1, 3), R0[6], R0[7]]
    seq += [lm(1), last_branch]
    return "\n".join("    " + x for x in seq)
A("L_loop:")
A(body(0, 1, sSA, sSB, "s_cbranch_scc0 L_done"))
A(body(1, 0, sSB, sSA, "s_cbranch_scc1 L_loop"))
A("L_done:")
A(st(5))

def W(h):
    src = vO + 32*(1-h)
    s = f"    v_add_u32 v28, s22, v{vX16}\n    v_lshrrev_b32 v30, 2, v{vX16}\n    v_add_u32 v29, s23, v{vX16}\n    v_add_u32 v31, s30, v30\n    v_add_u32 v30, s29, v30\n"
    s += "    s_nop 7\n" if h == 0 else "    s_nop 3\n"
    for k in range(8):
        s += f"    ds_write_b128 v28, {r(src+4*k,4)} offset:{1024*k}\n"
    s += f"    ds_write_b32 v30, v{vL}\n    s_waitcnt lgkmcnt(0)\n"
    s += f"L_pb{h}:\n    s_barrier\n    s_sub_u32 s24, s24, 1\n    s_cbranch_scc0 L_pb{h}\n"
    s += f"    ds_read_b32 v31, v31\n"
    for k in range(8):
        s += f"    ds_read_b128 {r(vKF+4*k,4)}, v29 offset:{1024*k}\n"
    dst = vO + 32*h
    s += f"    s_waitcnt lgkmcnt(8)\n    v_add_f32 v{vL}, v{vL}, v31\n"
    for k in range(8):
        s += f"    s_waitcnt lgkmcnt({7-k})\n"
        for u in range(2):
            s += f"    v_pk_add_f32 {r(dst+4*k+2*u,2)}, {r(dst+4*k+2*u,2)}, {r(vKF+4*k+2*u,2)}\n"
    return s
def CHK():
    return f"""    v_cmp_lt_f32 vcc, {hex(f32(2.0**-30))}, v{vL}
    v_cmp_gt_f32 s[82:83], v{vA+2}, v{vL}
    s_and_b64 vcc, vcc, s[82:83]
    s_cmp_eq_u64 vcc, -1
    s_cbranch_scc0 L_fallback
"""
def F(h):
    src = vO + 32*h
    s = f"    v_rcp_f32 v28, v{vL}\n    s_nop 0\n"
    for q in range(4):
        for k in range(4*q, 4*q+4):
            s += f"    v_pk_mul_f32 {r(src+2*k,2)}, {r(src+2*k,2)}, v[28:29] op_sel_hi:[1,0]\n"
        for k in range(4*q, 4*q+4):
            s += f"    v_cvt_pk_bf16_f32 v{vVF+k}, v{src+2*k}, v{src+2*k+1}\n"
        tw = vTW + (q >> 1)*2 + (q & 1)
        s += f"    ds_write_b128 v{tw}, {r(vVF+4*q,4)} offset:{4096*h}\n"
    s += "    s_waitcnt lgkmcnt(0)\n"
    dst = vKF + 16*h
    for i in range(4):
        s += f"    ds_read_b128 {r(dst+4*i,4)}, v{vTR} offset:{4096*h + 1024*i}\n"
    for i in range(4):
        s += f"    s_waitcnt lgkmcnt({3-i})\n    buffer_store_dwordx4 {r(dst+4*i,4)}, v{vST}, s[48:51], s{84+i} offen offset:{128*h} {opt['stx']}\n"
    return s
A(f"""    s_mov_b32 s84, 0
    s_mov_b32 s85, 0x8000
    s_mov_b32 s86, 0x10000
    s_mov_b32 s87, 0x18000
    s_cmp_eq_u32 s21, 2
    s_cbranch_scc1 L_h1
    s_cmp_eq_u32 s21, 0
    s_cbranch_scc1 L_chk0n""")
A(W(0))
A("    s_branch L_chk0\nL_chk0n:\n    s_nop 7\n    s_waitcnt lgkmcnt(0)\nL_chk0:")
A(f"    v_mov_b32 v{vA+2}, {hex(f32(2.0**30))}")
A(st(6))
A(CHK())
A("L_f0:")
A(F(0))
A("    s_cmp_eq_u32 s21, 0\n    s_cbranch_scc1 L_f1\n    s_branch L_fin")
A("L_h1:")
A(W(1))
A(f"    v_mov_b32 v{vA+2}, {hex(f32(2.0**30))}")
A(st(6))
A(CHK())
A("L_f1:")
A(F(1))
A("L_fin:")
if opt['pad']:
    A(f"    s_mov_b32 s82, {opt['pad']}\nL_pad:\n    s_nop 15\n    s_nop 15\n    s_nop 15\n    s_nop 15\n    s_sub_u32 s82, s82, 1\n    s_cmp_lg_u32 s82, 0\n    s_cbranch_scc1 L_pad")
if opt['chase']:
    A(f"""    s_load_dwordx2 s[4:5], s[0:1], 48
    s_lshl_b32 s82, s2, 3
    s_add_u32 s82, s82, s14
    s_lshl_b32 s82, s82, 16
    v_mov_b32 v1, s82
    s_mov_b32 s82, {opt['chase']}
    s_waitcnt lgkmcnt(0) vmcnt(0)
L_chase:
    global_load_dword v2, v1, s[4:5]
    s_waitcnt vmcnt(0)
    v_and_b32 v2, 0, v2
    v_add_u32 v1, v1, v2
    v_add_u32 v1, 0x1000, v1
    s_sub_u32 s82, s82, 1
    s_cmp_lg_u32 s82, 0
    s_cbranch_scc1 L_chase""")
if opt['stamps']:
    A(st(7) + "    s_waitcnt vmcnt(0)\n" + st(8))
    A(stamp_flush(NST, 8, 94, 14, vt=230) if opt['stamps'] == 1 else dbg_flush(NST, 94, [(i, i+2, 0) for i in range(2, 9)] + [(2, 13, 1), (3, 14, 1), (8, 15, 1)]))
A("    s_endpgm")

A(f"""L_fallback:
    s_add_u32 s25, s25, s15
    s_add_u32 s52, s6, s25
    s_addc_u32 s53, s7, 0
    s_mov_b32 s54, s26
    s_add_u32 s56, s8, s25
    s_addc_u32 s57, s9, 0
    s_mov_b32 s58, s26
    v_mov_b32 v{vA+2}, v{vA}
    v_and_b32 v28, 31, v0
    v_lshlrev_b32 v28, 12, v28
    v_lshrrev_b32 v30, 5, v0
    v_lshl_add_u32 v224, v30, 7, v28
    v_lshlrev_b32 v30, 2, v30
    v_lshrrev_b32 v28, 4, v0
    v_lshlrev_b32 v28, 14, v28
    v_and_b32 v29, 15, v0
    v_lshl_add_u32 v225, v29, 4, v28
    v_mov_b32 v31, 0xff800000
    v_mov_b32 v226, 0xff800000
    s_sub_u32 s88, s28, {VOFF}
    v_add_u32 v{vV}, s88, v{vVL}
    s_mov_b32 s90, 0
L_fb_pass:
    s_mov_b32 s88, 0
    s_mov_b32 s89, s27
L_fb_tile:""")
for j in range(8): A(f"    buffer_load_dwordx4 {r(vKF+4*j,4)}, v224, s[52:55], s88 offen offset:{16*j}")
A(f"    v_sub_u32 v29, s89, v30")
A(cimask(vS[1], 29, 31))
A("    s_waitcnt vmcnt(0)")
for j in range(8): A("    " + qk(j, vS[0], r(vS[1], 16) if j == 0 else None))
A("    s_cmp_eq_u32 s90, 0\n    s_cbranch_scc0 L_fb_p2\n    s_nop 15")
for i in range(16): A(f"    v_max_f32 v226, v226, v{vS[0]+i}")
A("    s_branch L_fb_next\nL_fb_p2:")
for p in range(8):
    A(f"    s_add_u32 m0, s28, {p*VP}\n    s_add_u32 s91, s88, {((p & 3) + 16*(p >> 2))*4096}\n    buffer_load_dwordx4 v225, s[56:59], s91 offen lds")
A("    s_nop 7")
for e in range(16): A(f"    v_fma_f32 v{vS[0]+e}, v{vS[0]+e}, s{sC}, -v226")
for e in range(16): A(f"    v_exp_f32 v{vS[0]+e}, v{vS[0]+e}")
A("    s_nop 0")
for p in range(8): A(f"    v_cvt_pk_bf16_f32 v{vP+p}, v{vS[0]+2*p}, v{vS[0]+2*p+1}")
A("    s_waitcnt vmcnt(0)")
for a in range(2):
    for b in range(4):
        for s in range(2): A("    " + vread(a, b, s))
A("    s_waitcnt lgkmcnt(0)")
for a in range(2):
    for b in range(4): A("    " + pv(a, b))
    A("    " + lm(a))
A(f"""L_fb_next:
    s_add_u32 s88, s88, 0x20000
    s_sub_u32 s89, s89, 32
    s_cmp_gt_i32 s89, 0
    s_cbranch_scc1 L_fb_tile
    s_cmp_eq_u32 s90, 0
    s_cbranch_scc0 L_fb_out
    s_mov_b32 s90, 1
    v_mov_b32 v227, v226
    s_nop 1
    v_permlane32_swap_b32 v227, v226
    v_max_f32 v226, v226, v227
    v_mul_f32 v226, s{sC}, v226""")
for i in range(64): A(f"    v_mov_b32 v{vO+i}, 0")
for i in range(4): A(f"    v_mov_b32 v{vL+i}, 0")
A("""    s_branch L_fb_pass
L_fb_out:
    s_nop 15
    s_cmp_eq_u32 s21, 2
    s_cbranch_scc1 L_f1
    s_branch L_f0""")
A(".p2align 7\nL_table:")
for rec in records():
    A("    .long " + ", ".join(hex(x) for x in rec))
A(f""".section .rodata,"a"
.p2align 6
.amdhsa_kernel {KN}
  .amdhsa_next_free_vgpr 256
  .amdhsa_next_free_sgpr 102
  .amdhsa_accum_offset 256
  .amdhsa_group_segment_fixed_size 0
  .amdhsa_kernarg_size 56
  .amdhsa_user_sgpr_count 2
  .amdhsa_user_sgpr_kernarg_segment_ptr 1
  .amdhsa_system_sgpr_workgroup_id_x 1
.end_amdhsa_kernel""")
open(opt['out'], 'w').write("\n".join(x.rstrip("\n") for x in o if x.strip()) + "\n")
```
